```python
import torch

def _softmax(x, axis=-1):
    return torch.softmax(x, dim=axis)
def _gelu(x):
    return torch.nn.functional.gelu(x, approximate="tanh")
def _silu(x):
    return torch.nn.functional.silu(x)
def _sigmoid(x):
    return torch.sigmoid(x)
def _layernorm(x, axis=-1, eps=1e-5):
    m = x.mean(dim=axis, keepdim=True)
    v = x.var(dim=axis, keepdim=True, unbiased=False)
    return (x - m) / torch.sqrt(v + eps)
def _scatter_add(tgt, idx, src, axis=0):
    return tgt.clone().index_add_(axis, idx, src)
def _segment_sum(src, seg, n):
    out = torch.zeros((n,) + src.shape[1:], dtype=src.dtype)
    return out.index_add_(0, seg, src)
def _pad(x, pw):
    flat = tuple(v for pair in reversed(pw) for v in pair)
    return torch.nn.functional.pad(x, flat)

kernel_name = 'interleave_layers__spectral_gfnet__mixer_channel_mlp__prompt'

def setup_inputs():

    _w = (lambda a: (lambda t: t.to(torch.bfloat16) if t.is_floating_point() else t)(torch.as_tensor(a)))
    def _A_setup():
        B, S, D = 1, 2048, 448
        Df = D // 2 + 1
        return {
            "x": _w((lambda *s: torch.randn(*s, dtype=torch.bfloat16) * 0.05)(B, S, D)),
            "w_r": _w((lambda *s: torch.randn(*s, dtype=torch.bfloat16) * 0.8)(S, Df) * 0.02),
            "w_i": _w((lambda *s: torch.randn(*s, dtype=torch.bfloat16) * 0.8)(S, Df) * 0.02),
        }
    _A_in = _A_setup()

    def _B_setup():
        B, S, D, F = 1, 2048, 448, 1792
        return {
            "x": _w((lambda *s: torch.randn(*s, dtype=torch.bfloat16) * 0.05)(B, S, D)),
            "w1": _w((lambda *s: torch.randn(*s, dtype=torch.bfloat16) * 0.8)(D, F) * (D ** -0.5)),
            "b1": _w((lambda *s: torch.randn(*s, dtype=torch.bfloat16) * 0.4)(F)),
            "w2": _w((lambda *s: torch.randn(*s, dtype=torch.bfloat16) * 0.05)(F, D) * (F ** -0.5)),
            "b2": _w((lambda *s: torch.randn(*s, dtype=torch.bfloat16) * 0.05)(D)),
        }
    _B_in = _B_setup()

    return {
        "A_x": _A_in["x"],
        "A_w_r": _A_in["w_r"],
        "A_w_i": _A_in["w_i"],
        "B_x": _B_in["x"],
        "B_w1": _B_in["w1"],
        "B_b1": _B_in["b1"],
        "B_w2": _B_in["w2"],
        "B_b2": _B_in["b2"],
    }

def reference(A_x, A_w_r, A_w_i, B_x, B_w1, B_b1, B_w2, B_b2):
    def _A_ref(x, w_r, w_i):
        B, S, D = x.shape
        X = (lambda x, axes=(-2,-1): torch.fft.rfft2(x.float(), dim=axes))(x, axes=(-2, -1))
        W = w_r + 1j * w_i
        X = X * W
        y = (lambda x, s, axes=(-2,-1): torch.fft.irfft2(x, s=s, dim=axes).to(torch.bfloat16))(X, (S, D), axes=(-2, -1))
        return y

    def _B_ref(x, w1, b1, w2, b2):
        y = _layernorm(x, axis=-1)
        h = _gelu(torch.einsum("bsd,df->bsf", y, w1) + b1)
        return torch.einsum("bsf,fd->bsd", h, w2) + b2

    x = A_x
    x = x + _A_ref(_layernorm(x, axis=-1), A_w_r, A_w_i)
    x = x + _B_ref(_layernorm(x, axis=-1), B_w1, B_b1, B_w2, B_b2)
    x = x + _A_ref(_layernorm(x, axis=-1), A_w_r, A_w_i)
    x = x + _B_ref(_layernorm(x, axis=-1), B_w1, B_b1, B_w2, B_b2)
    return x
```

```python
import re
import copy
import struct

REG_RE = re.compile(r"^(-|\|)?(abs\()?([vas])(\d+|\[(\d+):(\d+)\])\)?\|?$")


def f32bits(x):
    return struct.unpack("<I", struct.pack("<f", x))[0]


def f32hex(x):
    return "0x%08x" % f32bits(x)


def regs_of(op):
    op = op.strip()
    if op in ("vcc",):
        return [("s", 106), ("s", 107)]
    if op == "vcc_lo":
        return [("s", 106)]
    if op == "vcc_hi":
        return [("s", 107)]
    if op == "exec":
        return [("s", 126), ("s", 127)]
    if op == "m0":
        return [("s", 124)]
    m = REG_RE.match(op)
    if not m:
        return []
    c = m.group(3)
    if m.group(5) is not None:
        return [(c, i) for i in range(int(m.group(5)), int(m.group(6)) + 1)]
    return [(c, int(m.group(4)))]


TRANS = ("v_exp_f32", "v_log_f32", "v_rcp_f32", "v_rsq_f32", "v_sqrt_f32", "v_sin_f32", "v_cos_f32",
         "v_rcp_iflag_f32")


def vr(i, n=1):
    return "v%d" % i if n == 1 else "v[%d:%d]" % (i, i + n - 1)


def ar(i, n=1):
    return "a%d" % i if n == 1 else "a[%d:%d]" % (i, i + n - 1)


def sr(i, n=1):
    return "s%d" % i if n == 1 else "s[%d:%d]" % (i, i + n - 1)


class Ins:
    __slots__ = ("mn", "dst", "src", "kind", "passes", "srcc", "srcab", "pos", "wide_store_data", "text")


class Asm:
    def __init__(self):
        self.lines = []
        self.reset_state()
        self.maxv = 0
        self.maxa = -1
        self.maxs = 0
        self.nins = 0

    def reset_state(self):
        self.pos = 0
        self.hist = []
        self.vm = []
        self.lg = []
        self.vmid = 0
        self.lgid = 0

    def snapshot(self):
        return copy.deepcopy((self.pos, self.hist, self.vm, self.lg, self.vmid, self.lgid))

    def restore(self, snap):
        self.pos, self.hist, self.vm, self.lg, self.vmid, self.lgid = copy.deepcopy(snap)

    def raw(self, text):
        self.lines.append(text)

    def comment(self, text):
        self.lines.append("    ; " + text)

    def label(self, name):
        self.lines.append(name + ":")

    def _emit_wait(self, vm=None, lg=None):
        parts = []
        if vm is not None:
            vm = min(vm, 63)
            parts.append("vmcnt(%d)" % vm)
            self.vm = self.vm[len(self.vm) - vm:] if vm > 0 else []
        if lg is not None:
            lg = min(lg, 15)
            parts.append("lgkmcnt(%d)" % lg)
            self.lg = self.lg[len(self.lg) - lg:] if lg > 0 else []
        self.lines.append("    s_waitcnt " + " ".join(parts))
        self.pos += 1
        self.nins += 1

    def wait_vm_id(self, opid):
        n = None
        for i, (oid, _) in enumerate(self.vm):
            if oid == opid:
                n = len(self.vm) - 1 - i
        if n is not None:
            self._emit_wait(vm=n)

    def wait_lg_id(self, opid):
        n = None
        if any(x[2] for x in self.lg):
            if any(x[0] == opid for x in self.lg):
                self._emit_wait(lg=0)
            return
        for i, x in enumerate(self.lg):
            if x[0] == opid:
                n = len(self.lg) - 1 - i
        if n is not None:
            self._emit_wait(lg=n)

    def wait_all(self, vm=True, lg=True):
        v = 0 if (vm and self.vm) else None
        l = 0 if (lg and self.lg) else None
        if v is not None or l is not None:
            self._emit_wait(vm=v, lg=l)

    def last_vm(self):
        return self.vmid - 1

    def last_lg(self):
        return self.lgid - 1

    def nop(self, n):
        while n > 0:
            k = min(n, 16)
            self.lines.append("    s_nop %d" % (k - 1))
            self.pos += k
            self.nins += 1
            n -= k

    def barrier(self):
        self.wait_all(vm=False, lg=True)
        self.I("s_barrier")

    def _parse(self, text):
        t = text.strip()
        sp = t.split(None, 1)
        mn = sp[0]
        rest = sp[1] if len(sp) > 1 else ""
        ops = []
        cur = ""
        depth = 0
        for ch in rest:
            if ch in "[(":
                depth += 1
            if ch in "])":
                depth -= 1
            if ch == "," and depth == 0:
                ops.append(cur.strip())
                cur = ""
            else:
                cur += ch
        if cur.strip():
            ops.append(cur.strip())
        mods = ""
        if ops:
            l = ops[-1].split(None, 1)
            ops[-1] = l[0]
            mods = l[1] if len(l) > 1 else ""
        ins = Ins()
        ins.mn = mn
        ins.text = t
        ins.passes = 0
        ins.srcc = []
        ins.srcab = []
        ins.wide_store_data = []
        R = [regs_of(o) for o in ops]
        flat = lambda lst: [x for y in lst for x in y]
        base = mn.replace("_e32", "").replace("_e64", "").replace("_dpp", "").replace("_sdwa", "")
        if mn.startswith("v_mfma"):
            ins.kind = "mfma"
            ins.dst = R[0]
            ins.srcab = R[1] + R[2]
            ins.srcc = R[3]
            ins.src = ins.srcab + ins.srcc
            if "32x32x16" in mn or "32x32x8" in mn:
                ins.passes = 8
            elif "16x16x32" in mn or "16x16x16" in mn:
                ins.passes = 4
            else:
                raise ValueError("unknown mfma " + mn)
        elif mn.startswith("v_"):
            ins.kind = "valu"
            if base in TRANS:
                ins.kind = "trans"
            if base.startswith("v_permlane") and "swap" in base:
                ins.dst = R[0] + R[1]
                ins.src = R[0] + R[1]
                ins.kind = "permlane"
            elif base in ("v_add_co_u32", "v_sub_co_u32", "v_addc_co_u32", "v_subb_co_u32", "v_subrev_co_u32"):
                ins.dst = R[0] + R[1]
                ins.src = flat(R[2:])
            elif base in ("v_fmac_f32", "v_dot2c_f32_bf16", "v_pk_fmac_f16", "v_dot2c_f32_f16"):
                ins.dst = R[0]
                ins.src = flat(R)
                if "dot2c" in base:
                    ins.kind = "dot"
            elif base.startswith("v_dot2"):
                ins.dst = R[0]
                ins.src = flat(R[1:])
                ins.kind = "dot"
            elif base in ("v_readfirstlane_b32", "v_readlane_b32"):
                ins.dst = R[0]
                ins.src = flat(R[1:])
                ins.kind = "readlane"
            elif base == "v_nop":
                ins.dst = []
                ins.src = []
            else:
                ins.dst = R[0]
                ins.src = flat(R[1:])
            if "_dpp" in mn or "quad_perm" in mods or "row_" in mods:
                ins.kind = "dpp"
                ins.src = ins.src + ins.dst
        elif mn.startswith("ds_"):
            ins.kind = "ds"
            if mn.startswith("ds_read") or mn.startswith("ds_bpermute") or mn.startswith("ds_permute") or mn.startswith("ds_swizzle"):
                ins.dst = R[0]
                ins.src = flat(R[1:])
            else:
                ins.dst = []
                ins.src = flat(R)
        elif mn.startswith("buffer_") or mn.startswith("global_"):
            ins.kind = "vmem"
            is_lds = re.search(r"\blds\b", mods) is not None or "load_lds" in mn
            if "load" in mn and not is_lds:
                ins.dst = R[0]
                ins.src = flat(R[1:])
            elif "load" in mn:
                ins.dst = []
                ins.src = flat(R) + [("s", 124)]
                ins.kind = "vmem_lds"
            elif "atomic" in mn and re.search(r"\bsc0\b", mods):
                ins.dst = R[0]
                ins.src = flat(R)
            else:
                ins.dst = []
                ins.src = flat(R)
                if "x4" in mn or "x3" in mn:
                    ins.wide_store_data = R[0] if mn.startswith("buffer_") else R[1]
        elif mn.startswith("s_load") or mn.startswith("s_buffer_load") or mn in ("s_memtime", "s_memrealtime"):
            ins.kind = "smem"
            ins.dst = R[0]
            ins.src = flat(R[1:])
        elif mn.startswith("s_"):
            ins.kind = "salu"
            if mn.startswith("s_cmp") or mn.startswith("s_cbranch") or mn in (
                    "s_branch", "s_barrier", "s_nop", "s_setprio", "s_endpgm", "s_waitcnt", "s_sleep", "s_bitcmp1_b32", "s_bitcmp0_b32"):
                ins.dst = []
                ins.src = flat(R)
            elif "saveexec" in mn:
                ins.dst = R[0] + [("s", 126), ("s", 127)]
                ins.src = flat(R[1:])
            else:
                ins.dst = R[0]
                ins.src = flat(R[1:])
                if mn in ("s_addk_i32", "s_mulk_i32"):
                    ins.src = ins.src + R[0]
        else:
            raise ValueError("cannot parse " + text)
        for c, i in ins.dst + ins.src:
            if c == "v":
                self.maxv = max(self.maxv, i)
            elif c == "a":
                self.maxa = max(self.maxa, i)
            elif c == "s" and i < 106:
                self.maxs = max(self.maxs, i)
        return ins

    VALU_KINDS = ("valu", "trans", "permlane", "dot", "readlane", "dpp")

    def _need(self, new):
        need = 0
        S = set(new.src)
        D = set(new.dst)
        newvalu = new.kind in self.VALU_KINDS
        for old in self.hist:
            dist = self.pos - old.pos - 1
            req = 0
            oD = set(old.dst)
            oldvalu = old.kind in self.VALU_KINDS
            if old.kind == "mfma":
                p = old.passes
                far = {2: 5, 4: 8, 8: 12, 16: 20}[p]
                if new.kind == "mfma":
                    if oD & set(new.srcab):
                        req = max(req, far)
                    if oD & set(new.srcc):
                        if old.dst == new.srcc and old.passes == new.passes:
                            req = max(req, 0 if p >= 4 else 2)
                        else:
                            req = max(req, p + 2)
                    elif oD & D:
                        req = max(req, p + 2)
                else:
                    if oD & (S | D):
                        req = max(req, far)
                    if newvalu and set(old.srcc) & D:
                        req = max(req, {2: 1, 4: 3, 8: 7, 16: 15}[p])
            if oldvalu:
                vD = {x for x in oD if x[0] in "va"}
                sD = {x for x in oD if x[0] == "s"}
                if new.kind == "mfma" and vD & S:
                    req = max(req, 2)
                if old.kind == "dot":
                    if vD & (S | D):
                        if new.mn == old.mn and not (vD & set(x for x in new.src if x not in new.dst)):
                            pass
                        else:
                            req = max(req, 3)
                if old.kind == "trans" and vD & S and (newvalu or new.kind == "mfma"):
                    req = max(req, 1 if new.kind != "mfma" else 2)
                if new.kind == "readlane" and vD & S:
                    req = max(req, 1)
                if new.kind in ("dpp", "permlane") and vD & S:
                    req = max(req, 2)
                if sD:
                    if newvalu and sD & S:
                        req = max(req, 4 if new.kind == "readlane" else 2)
                    if new.kind in ("vmem", "vmem_lds") and sD & S:
                        req = max(req, 5)
                    if new.kind == "salu" and sD & S:
                        req = max(req, 1)
                    if ("s", 126) in sD:
                        req = max(req, 5)
                if "op_sel" in old.text and not old.mn.startswith("v_pk_") and vD & (S | D) and newvalu:
                    req = max(req, 1)
            if old.wide_store_data and set(old.wide_store_data) & D:
                req = max(req, 2)
            if old.kind == "salu" and ("s", 124) in oD and new.kind == "vmem_lds":
                req = max(req, 1)
            need = max(need, req - dist)
        return need

    def I(self, text):
        ins = self._parse(text)
        touched = set(ins.src) | set(ins.dst)
        vmn = None
        for i, (oid, regs) in enumerate(self.vm):
            if regs & touched:
                vmn = len(self.vm) - 1 - i
        lgn = None
        anys = any(x[2] for x in self.lg)
        for i, (oid, regs, is_s) in enumerate(self.lg):
            if regs & touched:
                if ins.kind == "ds" and not is_s and not (regs & set(ins.src)) and not anys:
                    continue
                lgn = 0 if anys else len(self.lg) - 1 - i
        if vmn is not None or lgn is not None:
            self._emit_wait(vm=vmn, lg=lgn)
        n = self._need(ins)
        if n > 0:
            self.nop(n)
        self.lines.append("    " + ins.text)
        ins.pos = self.pos
        if ins.mn == "s_nop":
            self.pos += int(text.split()[1]) + 1
        else:
            self.pos += 1
        self.nins += 1
        self.hist.append(ins)
        self.hist = [h for h in self.hist if self.pos - h.pos <= 24]
        if ins.kind in ("vmem", "vmem_lds"):
            self.vm.append((self.vmid, set(ins.dst)))
            self.vmid += 1
            if len(self.vm) > 63:
                self.vm = self.vm[-63:]
                raise ValueError("more than 63 vmem ops outstanding")
            return self.vmid - 1
        if ins.kind == "ds":
            self.lg.append((self.lgid, set(ins.dst), False))
            self.lgid += 1
            return self.lgid - 1
        if ins.kind == "smem":
            self.lg.append((self.lgid, set(ins.dst), True))
            self.lgid += 1
            return self.lgid - 1
        return None

    def text(self):
        return "\n".join(self.lines) + "\n"
```

```python
import math
import sys
import os
sys.path.insert(0, os.path.dirname(os.path.abspath(__file__)))
from asmgen import Asm, vr, ar, sr, f32hex

NAME = "interleave_layers__spectral_gfnet__mixer_channel_mlp__prompt"
S, N, FH = 2048, 448, 1792
XC_OFF = 0x0
HX_OFF = 0x200000
XR_OFF = HX_OFF + 224 * 32768
W1P_OFF = 0xB00000
W2P_OFF = 0xD00000
W2R_OFF = 0xF00000
WC_OFF = 0x1100000
SSQ_OFF = 0x1300000
B2P_OFF = 0x1304000
B1F_OFF = 0x1308000
WS_SIZE = 0x1400000
SC = math.sqrt(2.0 / N)
EPS = 1e-5

KA = dict(x=0, wr=8, wi=16, bx=24, w1=32, b1=40, w2=48, b2=56, out=64, dbg=72, ws=80)
NB = dict(x=S * N * 2, wr=S * 225 * 2, wi=S * 225 * 2, w1=N * FH * 2, b1=FH * 2, w2=FH * N * 2, b2=N * 2,
          out=S * N * 2, ws=WS_SIZE)

MF32 = "v_mfma_f32_32x32x16_bf16"
MF16 = "v_mfma_f32_16x16x32_bf16"

S_IDX = 3
WS = "s[4:7]"
SA = "s[8:11]"
SB = "s[12:15]"
S_W = 16


def load_srd(a, base, name):
    a.I("s_load_dwordx2 %s, s[0:1], %d" % (sr(base, 2), KA[name]))
    a.I("s_mov_b32 s%d, %d" % (base + 2, NB[name]))
    a.I("s_mov_b32 s%d, 0x00020000" % (base + 3))


def lane_wave(a):
    a.I("v_lshrrev_b32 v2, 6, v0")
    a.I("v_and_b32 v1, 63, v0")
    a.I("v_readfirstlane_b32 s%d, v2" % S_W)


def decode_4x7(a, s_rb, s_cb, tmp):
    a.I("s_lshr_b32 s%d, s%d, 3" % (tmp, S_IDX))
    a.I("s_mul_i32 s%d, s%d, 37" % (s_rb, tmp))
    a.I("s_lshr_b32 s%d, s%d, 8" % (s_rb, s_rb))
    a.I("s_mul_i32 s%d, s%d, 7" % (s_cb, s_rb))
    a.I("s_sub_u32 s%d, s%d, s%d" % (s_cb, tmp, s_cb))
    a.I("s_and_b32 s%d, s%d, 7" % (tmp, S_IDX))
    a.I("s_lshl_b32 s%d, s%d, 2" % (tmp, tmp))
    a.I("s_add_u32 s%d, s%d, s%d" % (s_rb, s_rb, tmp))


def gen_f_params(a, v_c, v_kf, v_ph, vt, dc_zero):
    a.I("v_lshrrev_b32 v%d, 1, v%d" % (vt, v_c))
    a.I("v_cvt_f32_u32 v%d, v%d" % (v_kf, vt))
    a.I("v_mul_f32 v%d, %s, v%d" % (v_kf, f32hex(1.0 / N), v_kf))
    a.I("v_and_b32 v%d, 1, v%d" % (vt, v_c))
    a.I("v_cvt_f32_u32 v%d, v%d" % (v_ph, vt))
    a.I("v_mul_f32 v%d, %s, v%d" % (v_ph, f32hex(0.25), v_ph))
    a.I("v_cmp_eq_u32 vcc, 0, v%d" % v_c)
    a.I("v_mov_b32 v%d, %s" % (vt, f32hex(0.125)))
    a.I("v_cndmask_b32 v%d, v%d, 0.5, vcc" % (v_kf, v_kf))
    a.I("v_cndmask_b32 v%d, v%d, v%d, vcc" % (v_ph, v_ph, vt))
    if not dc_zero:
        a.I("v_cmp_eq_u32 vcc, 1, v%d" % v_c)
        a.I("v_cndmask_b32 v%d, v%d, v%d, vcc" % (v_ph, v_ph, vt))


def gen_f_frags(a, FF, s_cb, perm, dc_zero, T):
    v_c, v_kf, v_ph, vt, v_d0 = T, T + 1, T + 2, T + 3, T + 4
    E = T + 5
    a.I("v_lshrrev_b32 v%d, 5, v1" % v_d0)
    a.I("v_lshlrev_b32 v%d, 3, v%d" % (v_d0, v_d0))
    a.I("s_mul_i32 s30, s%d, 112" % S_W)
    a.I("v_add_u32 v%d, s30, v%d" % (v_d0, v_d0))
    a.I("v_cvt_f32_u32 v%d, v%d" % (v_d0, v_d0))
    for i2 in range(2):
        a.I("s_lshr_b32 s30, s%d, 1" % S_W)
        a.I("s_xor_b32 s30, s30, %d" % i2)
        a.I("s_lshl_b32 s30, s30, 5")
        a.I("s_lshl_b32 s31, s%d, 6" % s_cb)
        a.I("s_add_u32 s30, s30, s31")
        if perm:
            a.I("v_and_b32 v%d, 0x13, v1" % v_c)
            a.I("v_and_b32 v%d, 4, v1" % vt)
            a.I("v_lshl_or_b32 v%d, v%d, 1, v%d" % (v_c, vt, v_c))
            a.I("v_and_b32 v%d, 8, v1" % vt)
            a.I("v_lshrrev_b32 v%d, 1, v%d" % (vt, vt))
            a.I("v_or_b32 v%d, v%d, v%d" % (v_c, vt, v_c))
        else:
            a.I("v_and_b32 v%d, 31, v1" % v_c)
        a.I("v_add_u32 v%d, s30, v%d" % (v_c, v_c))
        gen_f_params(a, v_c, v_kf, v_ph, vt, dc_zero)
        a.I("v_mul_f32 v%d, v%d, v%d" % (vt, v_d0, v_kf))
        a.I("v_fract_f32 v%d, v%d" % (vt, vt))
        a.I("v_add_f32 v%d, v%d, v%d" % (v_ph, vt, v_ph))
        for js in range(7):
            dst = FF + 4 * (7 * i2 + js)
            for half in range(2):
                tt = [T + 5 + q for q in range(4)]
                for q in range(4):
                    e = 4 * half + q
                    a.I("v_fmamk_f32 v%d, v%d, %s, v%d" % (tt[q], v_kf, f32hex(float(16 * js + e)), v_ph))
                for q in range(4):
                    a.I("v_cos_f32 v%d, v%d" % (tt[q], tt[q]))
                a.I("v_cvt_pk_bf16_f32 v%d, v%d, v%d" % (dst + 2 * half, tt[0], tt[1]))
                a.I("v_cvt_pk_bf16_f32 v%d, v%d, v%d" % (dst + 2 * half + 1, tt[2], tt[3]))


def sk4_reduce(a, ACC, TMP, T, pre_barrier):
    a.I("v_lshlrev_b32 v%d, 4, v1" % T)
    for i in range(1, 4):
        a.I("s_xor_b32 s30, s%d, %d" % (S_W, i))
        a.I("s_mul_i32 s30, s30, %d" % (3 * 4096))
        a.I("s_add_u32 s30, s30, %d" % ((i - 1) * 4096))
        a.I("v_add_u32 v%d, s30, v%d" % (T + i, T))
    a.I("s_mul_i32 s30, s%d, %d" % (S_W, 3 * 4096))
    a.I("v_add_u32 v%d, s30, v%d" % (T, T))
    if pre_barrier:
        a.barrier()
    for i in range(1, 4):
        for j in range(4):
            a.I("ds_write_b128 v%d, %s offset:%d" % (T + i, vr(ACC + 16 * i + 4 * j, 4), j * 1024))
    a.barrier()
    for k in range(3):
        for j in range(4):
            a.I("ds_read_b128 %s, v%d offset:%d" % (vr(TMP + 16 * k + 4 * j, 4), T, k * 4096 + j * 1024))
    for k in range(3):
        for j in range(8):
            a.I("v_pk_add_f32 %s, %s, %s" % (vr(ACC + 2 * j, 2), vr(ACC + 2 * j, 2), vr(TMP + 16 * k + 2 * j, 2)))


def store_xc(a, PK, s_rb, s_cb, T):
    a.I("v_lshrrev_b32 v%d, 5, v1" % T)
    a.I("v_lshlrev_b32 v%d, 14, v%d" % (T, T))
    a.I("v_and_b32 v%d, 31, v1" % (T + 1))
    a.I("v_lshl_add_u32 v%d, v%d, 2, v%d" % (T, T + 1, T))
    a.I("s_lshl_b32 s30, s%d, 18" % s_cb)
    a.I("s_lshr_b32 s31, s%d, 1" % S_W)
    a.I("s_lshl_b32 s31, s31, 17")
    a.I("s_add_u32 s30, s30, s31")
    a.I("s_lshl_b32 s31, s%d, 8" % s_rb)
    a.I("s_add_u32 s30, s30, s31")
    a.I("s_and_b32 s31, s%d, 1" % S_W)
    a.I("s_lshl_b32 s31, s31, 7")
    a.I("s_add_u32 s30, s30, s31")
    for j in range(8):
        a.I("s_add_u32 s31, s30, %d" % (XC_OFF + ((j % 2) + 4 * (j // 2)) * 8192))
        a.I("buffer_store_dword v%d, v%d, %s, s31 offen" % (PK + j, T, WS))


def job_rowgemm(a, mode):
    s_rb, s_cb = 20, 21
    STG, FF, ACC, T = 16, 72, 128, 2
    decode_4x7(a, s_rb, s_cb, 22)
    load_srd(a, 4, "ws")
    if mode == "a":
        load_srd(a, 8, "x")
        a.I("s_mul_i32 s22, s%d, %d" % (s_rb, 64 * 896))
    else:
        a.I("s_cmp_gt_u32 s%d, 28" % s_rb)
        a.I("s_cbranch_scc1 L_exit")
        load_srd(a, 8, "w2")
        a.I("s_load_dwordx2 s[12:13], s[0:1], %d" % KA["b2"])
        a.I("s_mul_i32 s22, s%d, %d" % (s_rb, 64 * 896))
        a.wait_all()
        a.I("s_cmp_eq_u32 s%d, 28" % s_rb)
        a.I("s_cselect_b32 s8, s12, s8")
        a.I("s_cselect_b32 s9, s13, s9")
        a.I("s_cselect_b32 s10, %d, s10" % NB["b2"])
        a.I("s_cselect_b32 s22, 0, s22")
    lane_wave(a)
    a.I("v_lshrrev_b32 v2, 3, v1")
    a.I("s_lshl_b32 s30, s%d, 4" % S_W)
    a.I("v_add_u32 v2, s30, v2")
    a.I("v_and_b32 v3, 7, v1")
    a.I("v_lshlrev_b32 v3, 4, v3")
    a.I("v_mul_u32_u24 v4, 896, v2")
    a.I("v_add_u32 v4, v4, v3")
    a.I("v_mul_u32_u24 v14, 912, v2")
    a.I("v_add_u32 v14, v14, v3")
    a.I("s_add_u32 s23, s22, %d" % (8 * 896))
    for aa in range(2):
        for b in range(7):
            a.I("buffer_load_dwordx4 %s, v4, %s, s%d offen offset:%d" % (vr(STG + 4 * (7 * aa + b), 4), SA, 22 + aa, 128 * b))
    gen_f_frags(a, FF, s_cb, perm=False, dc_zero=False, T=2)
    for aa in range(2):
        for b in range(7):
            a.I("ds_write_b128 v14, %s offset:%d" % (vr(STG + 4 * (7 * aa + b), 4), aa * 8 * 912 + 128 * b))
    a.I("v_and_b32 v2, 31, v1")
    a.I("v_mul_u32_u24 v2, 912, v2")
    a.I("v_lshrrev_b32 v3, 5, v1")
    a.I("v_lshl_add_u32 v2, v3, 4, v2")
    a.I("s_mul_i32 s30, s%d, 224" % S_W)
    a.I("s_and_b32 s31, s%d, 1" % S_W)
    a.I("s_mul_i32 s31, s31, %d" % (32 * 912))
    a.I("s_add_u32 s32, s30, s31")
    a.I("v_add_u32 v3, s32, v2")
    a.I("s_sub_u32 s32, s30, s31")
    a.I("s_add_u32 s32, s32, %d" % (32 * 912))
    a.I("v_add_u32 v4, s32, v2")
    a.barrier()
    for js in range(7):
        for j2 in range(2):
            a.I("ds_read_b128 %s, v%d offset:%d" % (vr(STG + 4 * (7 * j2 + js), 4), 3 + j2, 32 * js))
    for js in range(7):
        for i in range(4):
            i2, j2 = i // 2, i % 2
            f = vr(FF + 4 * (7 * i2 + js), 4)
            r = vr(STG + 4 * (7 * j2 + js), 4)
            c = vr(ACC + 16 * i, 16)
            A, B = (f, r) if mode == "a" else (r, f)
            a.I("%s %s, %s, %s, %s" % (MF32, c, A, B, c if js else "0"))
    sk4_reduce(a, ACC, STG, 2, pre_barrier=True)
    a.I("s_mov_b32 s34, %s" % f32hex(SC))
    for j in range(16):
        a.I("v_mul_f32 v%d, s34, v%d" % (ACC + j, ACC + j))
    PK = FF
    if mode == "a":
        for j in range(8):
            a.I("v_cvt_pk_bf16_f32 v%d, v%d, v%d" % (PK + j, ACC + 2 * j, ACC + 2 * j + 1))
        store_xc(a, PK, s_rb, s_cb, 2)
        a.I("s_endpgm")
    else:
        a.I("s_cmp_eq_u32 s%d, 28" % s_rb)
        a.I("s_cbranch_scc1 L_b2row")
        snap = a.snapshot()
        for j in range(8):
            a.I("v_cvt_pk_bf16_f32 v%d, v%d, v%d" % (PK + j, ACC + 2 * j, ACC + 2 * j + 1))
        a.I("v_lshlrev_b32 v2, 4, v1")
        a.I("s_lshl_b32 s30, s%d, 1" % s_cb)
        a.I("s_lshr_b32 s31, s%d, 1" % S_W)
        a.I("s_add_u32 s30, s30, s31")
        a.I("s_mul_i32 s30, s30, 112")
        a.I("s_lshl_b32 s31, s%d, 2" % s_rb)
        a.I("s_add_u32 s30, s30, s31")
        a.I("s_and_b32 s31, s%d, 1" % S_W)
        a.I("s_lshl_b32 s31, s31, 1")
        a.I("s_add_u32 s30, s30, s31")
        a.I("s_lshl_b32 s30, s30, 10")
        a.I("s_add_u32 s30, s30, %d" % W2P_OFF)
        a.I("buffer_store_dwordx4 %s, v2, %s, s30 offen" % (vr(PK, 4), WS))
        a.I("buffer_store_dwordx4 %s, v2, %s, s30 offen offset:1024" % (vr(PK + 4, 4), WS))
        a.I("s_endpgm")
        a.label("L_b2row")
        a.restore(snap)
        a.I("s_and_b32 s31, s%d, 1" % S_W)
        a.I("s_cmp_eq_u32 s31, 1")
        a.I("s_cbranch_scc1 L_exit")
        a.I("v_lshlrev_b32 v2, 2, v1")
        a.I("s_lshl_b32 s30, s%d, 8" % s_cb)
        a.I("s_lshl_b32 s31, s%d, 6" % S_W)
        a.I("s_add_u32 s30, s30, s31")
        a.I("s_add_u32 s30, s30, %d" % B2P_OFF)
        a.I("s_mov_b64 exec, 0xffffffff")
        a.I("buffer_store_dword v%d, v2, %s, s30 offen" % (ACC, WS))
        a.I("s_endpgm")


def stage_tr(a, STG, rowstride, s_base):
    a.I("v_lshrrev_b32 v2, 3, v1")
    a.I("s_mul_i32 s30, s%d, 112" % S_W)
    a.I("v_add_u32 v3, s30, v2")
    a.I("v_and_b32 v4, 7, v1")
    a.I("v_mul_u32_u24 v5, %d, v3" % rowstride)
    a.I("v_lshl_add_u32 v5, v4, 4, v5")
    a.I("v_and_b32 v6, 2, v2")
    a.I("v_lshlrev_b32 v6, 1, v6")
    a.I("v_xor_b32 v6, v6, v4")
    a.I("v_lshlrev_b32 v6, 4, v6")
    a.I("v_lshl_add_u32 v14, v3, 7, v6")
    for j in range(14):
        a.I("s_add_u32 s31, s%d, %d" % (s_base, 8 * j * rowstride))
        a.I("buffer_load_dwordx4 %s, v5, %s, s31 offen" % (vr(STG + 4 * j, 4), SA))


def stage_tr_write(a, STG):
    for j in range(14):
        a.I("ds_write_b128 v14, %s offset:%d" % (vr(STG + 4 * j, 4), j * 1024))


def tr_addr(a, vdst, hi_rows, rot):
    a.I("v_and_b32 v2, 15, v1")
    a.I("v_lshrrev_b32 v2, 2, v2")
    a.I("v_lshrrev_b32 v3, 5, v1")
    a.I("v_mul_u32_u24 v3, %d, v3" % hi_rows)
    a.I("v_add_u32 v3, v3, v2")
    a.I("s_mul_i32 s30, s%d, 112" % S_W)
    a.I("v_add_u32 v3, s30, v3")
    a.I("v_lshlrev_b32 v3, 7, v3")
    a.I("v_and_b32 v4, 16, v1")
    a.I("v_lshl_add_u32 v3, v4, 1, v3")
    a.I("v_and_b32 v4, 3, v1")
    a.I("v_lshl_add_u32 v3, v4, 3, v3")
    a.I("v_and_b32 v4, 2, v2")
    a.I("v_lshlrev_b32 v4, 5, v4")
    a.I("v_or_b32 v3, v3, v4")
    if rot:
        a.I("s_and_b32 s30, s%d, 1" % S_W)
        a.I("s_lshl_b32 s30, s30, 6")
        a.I("v_xor_b32 v%d, s30, v3" % vdst)
    else:
        a.I("v_mov_b32 v%d, v3" % vdst)
    a.I("v_xor_b32 v%d, 64, v%d" % (vdst + 1, vdst))


def job_w1p(a):
    s_fb, s_kb = 20, 21
    STG, FF, ACC = 16, 72, 128
    decode_4x7(a, s_fb, s_kb, 22)
    a.I("s_cmp_gt_u32 s%d, 27" % s_fb)
    a.I("s_cbranch_scc1 L_exit")
    load_srd(a, 4, "ws")
    load_srd(a, 8, "w1")
    lane_wave(a)
    a.I("s_lshl_b32 s22, s%d, 7" % s_fb)
    stage_tr(a, STG, 3584, 22)
    gen_f_frags(a, FF, s_kb, perm=True, dc_zero=True, T=2)
    stage_tr_write(a, STG)
    tr_addr(a, 5, 8, rot=True)
    a.wait_all(vm=False)
    for js in range(7):
        for j2 in range(2):
            for m in range(2):
                a.I("ds_read_b64_tr_b16 %s, v%d offset:%d" % (vr(STG + 4 * (7 * j2 + js) + 2 * m, 2), 5 + j2, (16 * js + 4 * m) * 128))
    for js in range(7):
        for i in range(4):
            i2, j2 = i // 2, i % 2
            c = vr(ACC + 16 * i, 16)
            a.I("%s %s, %s, %s, %s" % (MF32, c, vr(FF + 4 * (7 * i2 + js), 4), vr(STG + 4 * (7 * j2 + js), 4), c if js else "0"))
    sk4_reduce(a, ACC, STG, 2, pre_barrier=True)
    a.I("s_mov_b32 s34, %s" % f32hex(SC))
    for j in range(16):
        a.I("v_mul_f32 v%d, s34, v%d" % (ACC + j, ACC + j))
    PK = FF
    for j in range(8):
        a.I("v_cvt_pk_bf16_f32 v%d, v%d, v%d" % (PK + j, ACC + 2 * j, ACC + 2 * j + 1))
    a.I("v_lshlrev_b32 v2, 4, v1")
    a.I("s_lshl_b32 s30, s%d, 1" % s_fb)
    a.I("s_and_b32 s31, s%d, 1" % S_W)
    a.I("s_add_u32 s30, s30, s31")
    a.I("s_mul_i32 s30, s30, 28")
    a.I("s_lshl_b32 s31, s%d, 2" % s_kb)
    a.I("s_add_u32 s30, s30, s31")
    a.I("s_and_b32 s31, s%d, 2" % S_W)
    a.I("s_add_u32 s30, s30, s31")
    a.I("s_lshl_b32 s30, s30, 10")
    a.I("s_add_u32 s30, s30, %d" % W1P_OFF)
    a.I("buffer_store_dwordx4 %s, v2, %s, s30 offen" % (vr(PK, 4), WS))
    a.I("buffer_store_dwordx4 %s, v2, %s, s30 offen offset:1024" % (vr(PK + 4, 4), WS))
    a.I("s_endpgm")


def job_w2r(a):
    STG = 16
    load_srd(a, 4, "ws")
    load_srd(a, 8, "w2")
    lane_wave(a)
    a.I("s_and_b32 s20, s%d, 3" % S_IDX)
    a.I("s_lshr_b32 s21, s%d, 2" % S_IDX)
    a.I("s_mul_i32 s22, s20, %d" % (448 * 896))
    a.I("s_lshl_b32 s30, s21, 7")
    a.I("s_add_u32 s22, s22, s30")
    stage_tr(a, STG, 896, 22)
    stage_tr_write(a, STG)
    tr_addr(a, 5, 4, rot=False)
    a.wait_all(vm=False)
    for js in range(7):
        for j2 in range(2):
            for m in range(2):
                a.I("ds_read_b64_tr_b16 %s, v%d offset:%d" % (vr(STG + 4 * (7 * j2 + js) + 2 * m, 2), 5 + j2, (16 * js + 8 * m) * 128))
    a.I("v_lshlrev_b32 v2, 4, v1")
    a.I("s_mul_i32 s30, s21, 280")
    a.I("s_mul_i32 s31, s20, 28")
    a.I("s_add_u32 s30, s30, s31")
    a.I("s_mul_i32 s31, s%d, 7" % S_W)
    a.I("s_add_u32 s30, s30, s31")
    a.I("s_lshl_b32 s30, s30, 10")
    for j2 in range(2):
        for js in range(7):
            a.I("s_add_u32 s31, s30, %d" % (W2R_OFF + (140 * j2 + js) * 1024))
            a.I("buffer_store_dwordx4 %s, v2, %s, s31 offen" % (vr(STG + 4 * (7 * j2 + js), 4), WS))
    a.I("s_endpgm")


def job_ft(a):
    load_srd(a, 4, "ws")
    lane_wave(a)
    a.I("v_and_b32 v2, 31, v1")
    a.I("s_lshl_b32 s30, s%d, 5" % S_IDX)
    a.I("v_add_u32 v2, s30, v2")
    a.I("v_cvt_f32_u32 v2, v2")
    a.I("v_mul_f32 v2, %s, v2" % f32hex(1.0 / N))
    a.I("v_lshrrev_b32 v3, 5, v1")
    a.I("v_lshlrev_b32 v3, 2, v3")
    a.I("s_mul_i32 s30, s%d, 56" % S_W)
    a.I("v_add_u32 v3, s30, v3")
    a.I("v_cmp_eq_u32 s[32:33], 0, v3")
    a.I("v_cvt_f32_u32 v3, v3")
    a.I("v_mul_f32 v3, v3, v2")
    a.I("v_fract_f32 v3, v3")
    a.I("v_lshlrev_b32 v4, 4, v1")
    a.I("s_mul_i32 s30, s%d, 140" % S_IDX)
    a.I("s_mul_i32 s31, s%d, 7" % S_W)
    a.I("s_add_u32 s30, s30, s31")
    a.I("s_lshl_b32 s30, s30, 10")
    a.I("s_mov_b32 s34, %s" % f32hex(SC))
    a.I("v_lshlrev_b32 v5, 31, v1")
    a.I("v_mov_b32 v6, %s" % f32hex(math.sqrt(0.5)))
    a.I("v_xor_b32 v5, v5, v6")
    for js in range(7):
        D = 16 + 4 * js
        for q in range(4):
            a.I("v_fmamk_f32 v8, v2, %s, v3" % f32hex(float(8 * js + q)))
            a.I("v_cos_f32 v9, v8")
            a.I("v_sin_f32 v10, v8")
            if js == 0 and q == 0:
                a.I("v_cndmask_b32 v9, v9, v5, s[32:33]")
                a.I("v_cndmask_b32 v10, v10, -v6, s[32:33]")
            a.I("v_mul_f32 v9, s34, v9")
            a.I("v_mul_f32 v10, s34, v10")
            a.I("v_cvt_pk_bf16_f32 v%d, v9, -v10" % (D + q))
        a.I("s_add_u32 s31, s30, %d" % (W2R_OFF + (112 + js) * 1024))
        a.I("buffer_store_dwordx4 %s, v4, %s, s31 offen" % (vr(D, 4), WS))
    a.I("s_endpgm")


def job_stats(a):
    load_srd(a, 4, "ws")
    load_srd(a, 8, "x")
    a.I("v_lshrrev_b32 v2, 3, v0")
    a.I("v_and_b32 v3, 7, v0")
    a.I("v_mul_u32_u24 v4, 896, v2")
    a.I("v_lshl_add_u32 v4, v3, 4, v4")
    a.I("s_mul_i32 s22, s%d, %d" % (S_IDX, 32 * 896))
    for b in range(7):
        a.I("buffer_load_dwordx4 %s, v4, %s, s22 offen offset:%d" % (vr(16 + 4 * b, 4), SA, 128 * b))
    a.I("v_mov_b32 v6, 0")
    a.I("v_mov_b32 v7, 0")
    a.I("v_mov_b32 v8, 0x3f803f80")
    for j in range(28):
        a.I("v_dot2c_f32_bf16 v6, v%d, v%d" % (16 + j, 16 + j))
        a.I("v_dot2c_f32_bf16 v7, v%d, v8" % (16 + j))
    for mod in ("quad_perm:[1,0,3,2]", "quad_perm:[2,3,0,1]", "row_half_mirror"):
        for r in (6, 7):
            a.I("v_add_f32_dpp v%d, v%d, v%d %s row_mask:0xf bank_mask:0xf" % (r, r, r, mod))
    a.I("v_mul_f32 v7, v7, v7")
    a.I("v_fmamk_f32 v6, v7, %s, v6" % f32hex(-1.0 / N))
    a.I("v_max_f32 v6, 0, v6")
    a.I("v_lshlrev_b32 v2, 2, v2")
    a.I("s_lshl_b32 s22, s%d, 7" % S_IDX)
    a.I("s_add_u32 s22, s22, %d" % SSQ_OFF)
    a.I("buffer_store_dword v6, v2, %s, s22 offen" % WS)
    a.I("s_endpgm")


def job_wt(a):
    load_srd(a, 4, "ws")
    load_srd(a, 8, "wr")
    load_srd(a, 12, "wi")
    a.I("v_lshlrev_b32 v2, 4, v0")
    a.I("s_mul_i32 s22, s%d, 7200" % S_IDX)
    a.I("s_add_u32 s23, s22, 4096")
    a.I("buffer_load_dwordx4 v[16:19], v2, %s, s22 offen" % SA)
    a.I("buffer_load_dwordx4 v[20:23], v2, %s, s23 offen" % SA)
    a.I("buffer_load_dwordx4 v[24:27], v2, %s, s22 offen" % SB)
    a.I("buffer_load_dwordx4 v[28:31], v2, %s, s23 offen" % SB)
    a.I("v_and_b32 v3, 15, v0")
    a.I("v_lshrrev_b32 v4, 4, v0")
    a.I("v_mul_u32_u24 v5, 450, v3")
    a.I("v_lshl_add_u32 v5, v4, 1, v5")
    a.I("v_cmp_eq_u32 vcc, 0, v4")
    a.I("v_add_u32 v6, 448, v5")
    a.I("v_cndmask_b32 v6, v5, v6, vcc")
    a.I("v_lshlrev_b32 v7, 13, v4")
    a.I("v_lshl_add_u32 v7, v3, 2, v7")
    for i in range(4):
        a.I("ds_write_b128 v2, %s offset:%d" % (vr(16 + 4 * i, 4), 4096 * i))
    a.barrier()
    for j in range(14):
        ad = 6 if j == 0 else 5
        a.I("ds_read_u16 v%d, v%d offset:%d" % (32 + j, ad, 32 * j))
        a.I("ds_read_u16 v%d, v%d offset:%d" % (48 + j, ad, 8192 + 32 * j))
    a.I("s_lshl_b32 s22, s%d, 6" % S_IDX)
    for j in range(14):
        a.I("v_lshl_or_b32 v%d, v%d, 16, v%d" % (32 + j, 48 + j, 32 + j))
        a.I("s_add_u32 s23, s22, %d" % (WC_OFF + j * 16 * 8192))
        a.I("buffer_store_dword v%d, v7, %s, s23 offen" % (32 + j, WS))
    a.I("s_endpgm")


def job_b1f(a):
    load_srd(a, 4, "ws")
    load_srd(a, 8, "b1")
    a.I("s_lshl_b32 s22, s%d, 8" % S_IDX)
    a.I("v_add_u32 v2, s22, v0")
    a.I("v_and_b32 v3, 0xffffffe3, v2")
    a.I("v_and_b32 v4, 16, v2")
    a.I("v_lshrrev_b32 v4, 2, v4")
    a.I("v_or_b32 v3, v3, v4")
    a.I("v_and_b32 v4, 12, v2")
    a.I("v_lshl_or_b32 v3, v4, 1, v3")
    a.I("v_lshlrev_b32 v3, 1, v3")
    a.I("buffer_load_ushort v5, v3, %s, 0 offen" % SA)
    a.I("v_lshlrev_b32 v2, 2, v2")
    a.I("s_mov_b32 s23, %d" % B1F_OFF)
    a.I("v_lshlrev_b32 v5, 16, v5")
    a.I("buffer_store_dword v5, v2, %s, s23 offen" % WS)
    a.I("s_endpgm")


def cmul_pk(a, ore, oim, re, im, c, s, conj_out=False):
    a.I("v_pk_mul_f32 %s, %s, %s" % (vr(ore, 2), vr(re, 2), vr(c, 2)))
    a.I("v_pk_mul_f32 %s, %s, %s" % (vr(oim, 2), vr(im, 2), vr(c, 2)))
    a.I("v_pk_fma_f32 %s, %s, %s, %s" % (vr(ore, 2), vr(im, 2), vr(s, 2), vr(ore, 2)))
    a.I("v_pk_fma_f32 %s, %s, %s, %s neg_lo:[1,0,0] neg_hi:[1,0,0]" % (vr(oim, 2), vr(re, 2), vr(s, 2), vr(oim, 2)))


def job_col(a):
    X, Q, W = 16, 24, 32
    G, H = 40, 72
    C1, S1, C2, S2 = 104, 112, 120, 128
    XRE, XIM = 136, 144
    WRE, WIM = 152, 160
    ACC = 168
    FR = 184
    O = 216
    PKD = 232
    load_srd(a, 4, "ws")
    a.I("s_and_b32 s20, s%d, 7" % S_IDX)
    a.I("s_lshr_b32 s21, s%d, 5" % S_IDX)
    a.I("s_lshl_b32 s21, s21, 3")
    a.I("s_add_u32 s20, s20, s21")
    a.I("s_lshr_b32 s21, s%d, 3" % S_IDX)
    a.I("s_and_b32 s21, s21, 3")
    a.I("s_lshl_b32 s22, s20, 2")
    a.I("s_add_u32 s22, s22, s21")
    lane_wave(a)
    a.I("v_and_b32 v3, 15, v1")
    a.I("v_lshrrev_b32 v4, 4, v1")
    a.I("v_lshlrev_b32 v5, 11, v2")
    a.I("v_lshl_add_u32 v5, v4, 9, v5")
    a.I("v_lshl_add_u32 v5, v3, 2, v5")
    a.I("v_lshlrev_b32 v6, 6, v2")
    a.I("v_lshl_add_u32 v6, v4, 10, v6")
    a.I("v_lshl_add_u32 v6, v3, 2, v6")
    a.I("s_lshl_b32 s23, s22, 13")
    a.I("s_add_u32 s24, s23, %d" % XC_OFF)
    a.I("s_mov_b32 s25, %d" % SSQ_OFF)
    a.I("s_add_u32 s26, s23, %d" % WC_OFF)
    a.I("s_add_u32 s27, s23, %d" % (WC_OFF + 4096))
    for t in range(2):
        for r in range(4):
            a.I("buffer_load_dword v%d, v5, %s, s25 offen offset:%d" % (Q + 4 * t + r, WS, 128 * r + 64 * t))
    for t in range(2):
        for r in range(4):
            a.I("buffer_load_dword v%d, v5, %s, s24 offen offset:%d" % (X + 4 * t + r, WS, 128 * r + 64 * t))
    for u in range(2):
        for r in range(4):
            a.I("buffer_load_dword v%d, v6, %s, s%d offen offset:%d" % (W + 4 * u + r, WS, 26 + u, 256 * r))
    a.I("v_lshl_add_u32 v7, v2, 4, v3")
    a.I("v_cvt_f32_u32 v7, v7")
    a.I("v_lshlrev_b32 v8, 2, v4")
    a.I("v_cvt_f32_u32 v8, v8")
    a.I("v_cvt_f32_u32 v9, v3")
    a.I("v_mul_f32 v10, %s, v7" % f32hex(1.0 / 64))
    a.I("v_mul_f32 v11, v10, v8")
    for ks in range(4):
        for r in range(4):
            a.I("v_fmamk_f32 v12, v10, %s, v11" % f32hex(float(16 * ks + r)))
            a.I("v_cos_f32 v13, v12")
            a.I("v_sin_f32 v14, v12")
            a.I("v_cvt_pk_bf16_f32 v%d, v13, v14" % (G + 8 * ks + r))
            a.I("v_cvt_pk_bf16_f32 v%d, -v14, v13" % (G + 8 * ks + 4 + r))
    for lt in range(2):
        a.I("v_add_f32 v10, %s, v9" % f32hex(16.0 * lt))
        a.I("v_mul_f32 v10, %s, v10" % f32hex(1.0 / 32))
        a.I("v_mul_f32 v11, v10, v8")
        for st in range(2):
            for r in range(4):
                a.I("v_fmamk_f32 v12, v10, %s, v11" % f32hex(float(16 * st + r)))
                a.I("v_cos_f32 v13, v12")
                a.I("v_sin_f32 v14, v12")
                a.I("v_cvt_pk_bf16_f32 v%d, v13, v14" % (H + 16 * lt + 8 * st + r))
                a.I("v_cvt_pk_bf16_f32 v%d, -v14, v13" % (H + 16 * lt + 8 * st + 4 + r))
    a.I("v_mul_f32 v10, %s, v7" % f32hex(1.0 / 2048))
    a.I("v_mul_f32 v11, v10, v8")
    for t in range(2):
        for r in range(4):
            a.I("v_fmamk_f32 v12, v10, %s, v11" % f32hex(float(16 * t + r)))
            a.I("v_cos_f32 v%d, v12" % (C1 + 4 * t + r))
            a.I("v_sin_f32 v%d, v12" % (S1 + 4 * t + r))
    a.I("v_lshlrev_b32 v12, 4, v2")
    a.I("v_cvt_f32_u32 v12, v12")
    a.I("v_add_f32 v8, v8, v12")
    for t in range(2):
        a.I("v_add_f32 v10, %s, v9" % f32hex(16.0 * t))
        a.I("v_mul_f32 v10, %s, v10" % f32hex(1.0 / 2048))
        a.I("v_mul_f32 v11, v10, v8")
        for r in range(4):
            a.I("v_fmamk_f32 v12, v10, %s, v11" % f32hex(float(r)))
            a.I("v_cos_f32 v%d, v12" % (C2 + 4 * t + r))
            a.I("v_sin_f32 v%d, v12" % (S2 + 4 * t + r))
    a.I("v_lshlrev_b32 v8, 9, v4")
    a.I("v_lshl_add_u32 v8, v3, 4, v8")
    a.I("v_lshl_add_u32 v7, v2, 11, v8")
    a.I("s_cmp_eq_u32 s22, 0")
    a.I("s_cselect_b32 s28, 0, 1.0")
    a.I("s_cselect_b32 s29, 0, -1.0")
    a.I("v_mov_b32 v9, %s" % f32hex(EPS))
    for j in range(8):
        a.I("v_fmamk_f32 v%d, v%d, %s, v9" % (Q + j, Q + j, f32hex(1.0 / N)))
    for j in range(8):
        a.I("v_rsq_f32 v%d, v%d" % (Q + j, Q + j))
    for j in range(8):
        a.I("v_lshlrev_b32 v%d, 16, v%d" % (XRE + j, X + j))
        a.I("v_and_b32 v%d, 0xffff0000, v%d" % (XIM + j, X + j))
    for j in range(0, 8, 2):
        a.I("v_pk_mul_f32 %s, %s, %s" % (vr(O + j, 2), vr(XRE + j, 2), vr(Q + j, 2)))
        a.I("v_pk_mul_f32 %s, %s, %s" % (vr(O + 8 + j, 2), vr(XIM + j, 2), vr(Q + j, 2)))
        a.I("v_pk_mul_f32 %s, %s, s[28:29] op_sel_hi:[1,0]" % (vr(O + 8 + j, 2), vr(O + 8 + j, 2)))
    for j in range(8):
        a.I("v_cvt_pk_bf16_f32 v%d, v%d, v%d" % (PKD + j, O + j, O + 8 + j))
    for t in range(2):
        a.I("ds_write_b128 v7, %s offset:%d" % (vr(PKD + 4 * t, 4), 256 * t))
    a.I("s_mov_b32 s30, %s" % f32hex(1.0 / S))
    a.I("s_mov_b32 s31, %s" % f32hex(1.0 / S))
    for j in range(8):
        a.I("v_lshlrev_b32 v%d, 16, v%d" % (WRE + j, W + j))
        a.I("v_and_b32 v%d, 0xffff0000, v%d" % (WIM + j, W + j))
    for j in range(0, 8, 2):
        a.I("v_pk_mul_f32 %s, %s, s[30:31]" % (vr(WRE + j, 2), vr(WRE + j, 2)))
        a.I("v_pk_mul_f32 %s, %s, s[30:31]" % (vr(WIM + j, 2), vr(WIM + j, 2)))
    a.barrier()

    def big_step(lds_off, data_is_A):
        for t in range(2):
            for ks in range(4):
                a.I("ds_read_b128 %s, v8 offset:%d" % (vr(FR + 16 * t + 4 * ks, 4), lds_off + 2048 * ks + 256 * t))
        for t in range(2):
            for ks in range(4):
                for c in range(2):
                    acc = vr(ACC + 8 * t + 4 * c, 4)
                    d = vr(FR + 16 * t + 4 * ks, 4)
                    g = vr(G + 8 * ks + 4 * c, 4)
                    A, B = (d, g) if data_is_A else (g, d)
                    a.I("%s %s, %s, %s, %s" % (MF16, acc, A, B, acc if ks else "0"))

    def small_step(data_is_A):
        for o in range(2):
            for k in range(2):
                for c in range(2):
                    acc = vr(ACC + 8 * o + 4 * c, 4)
                    d = vr(PKD + 4 * k, 4)
                    h = vr(H + 16 * o + 8 * k + 4 * c, 4)
                    A, B = (d, h) if data_is_A else (h, d)
                    a.I("%s %s, %s, %s, %s" % (MF16, acc, A, B, acc if k else "0"))

    def twiddle(C, Sn):
        for t in range(2):
            for j in range(0, 4, 2):
                cmul_pk(a, O + 4 * t + j, O + 8 + 4 * t + j, ACC + 8 * t + j, ACC + 8 * t + 4 + j, C + 4 * t + j, Sn + 4 * t + j)
            for r in range(4):
                a.I("v_cvt_pk_bf16_f32 v%d, v%d, v%d" % (PKD + 4 * t + r, O + 4 * t + r, O + 8 + 4 * t + r))

    big_step(0, True)
    twiddle(C1, S1)
    small_step(False)
    for u in range(2):
        for j in range(0, 4, 2):
            re, im = ACC + 8 * u + j, ACC + 8 * u + 4 + j
            wr, wi = WRE + 4 * u + j, WIM + 4 * u + j
            ore, oim = O + 4 * u + j, O + 8 + 4 * u + j
            a.I("v_pk_mul_f32 %s, %s, %s" % (vr(ore, 2), vr(re, 2), vr(wr, 2)))
            a.I("v_pk_mul_f32 %s, %s, %s" % (vr(oim, 2), vr(re, 2), vr(wi, 2)))
            a.I("v_pk_fma_f32 %s, %s, %s, %s neg_lo:[1,0,0] neg_hi:[1,0,0]" % (vr(ore, 2), vr(im, 2), vr(wi, 2), vr(ore, 2)))
            a.I("v_pk_fma_f32 %s, %s, %s, %s" % (vr(oim, 2), vr(im, 2), vr(wr, 2), vr(oim, 2)))
        for r in range(4):
            a.I("v_cvt_pk_bf16_f32 v%d, v%d, -v%d" % (PKD + 4 * u + r, O + 4 * u + r, O + 8 + 4 * u + r))
    small_step(True)
    twiddle(C2, S2)
    for t in range(2):
        a.I("ds_write_b128 v7, %s offset:%d" % (vr(PKD + 4 * t, 4), 8192 + 256 * t))
    a.barrier()
    big_step(8192, False)
    a.I("v_lshlrev_b32 v5, 2, v5")
    a.I("s_lshl_b32 s23, s20, 15")
    a.I("s_lshl_b32 s24, s21, 2")
    a.I("s_add_u32 s23, s23, s24")
    a.I("s_add_u32 s23, s23, %d" % XR_OFF)
    for t in range(2):
        for j in range(0, 4, 2):
            a.I("v_pk_add_f32 %s, %s, %s" % (vr(O + 4 * t + j, 2), vr(XRE + 4 * t + j, 2), vr(ACC + 8 * t + j, 2)))
            a.I("v_pk_fma_f32 %s, %s, s[28:29], %s op_sel:[0,1,0] op_sel_hi:[1,1,1]" % (
                vr(O + 8 + 4 * t + j, 2), vr(ACC + 8 * t + 4 + j, 2), vr(XIM + 4 * t + j, 2)))
        for r in range(4):
            a.I("v_cvt_pk_bf16_f32 v%d, v%d, v%d" % (PKD + 4 * t + r, O + 4 * t + r, O + 8 + 4 * t + r))
            a.I("buffer_store_dword v%d, v5, %s, s23 offen offset:%d" % (PKD + 4 * t + r, WS, 512 * r + 256 * t))
    a.I("s_endpgm")


def job_gemm1(a):
    XF, ACC, B1 = 16, 128, 192
    s_rb, s_fb = 20, 21
    load_srd(a, 4, "ws")
    a.I("s_lshr_b32 s22, s%d, 3" % S_IDX)
    a.I("s_cmp_ge_u32 s22, 14")
    a.I("s_cselect_b32 s%d, 1, 0" % s_rb)
    a.I("s_mul_i32 s23, s%d, 14" % s_rb)
    a.I("s_sub_u32 s%d, s22, s23" % s_fb)
    a.I("s_and_b32 s22, s%d, 7" % S_IDX)
    a.I("s_lshl_b32 s22, s22, 1")
    a.I("s_add_u32 s%d, s%d, s22" % (s_rb, s_rb))
    lane_wave(a)
    a.I("v_lshrrev_b32 v3, 5, v1")
    a.I("v_and_b32 v4, 31, v1")
    a.I("v_lshl_add_u32 v4, v2, 5, v4")
    a.I("v_lshlrev_b32 v5, 15, v3")
    a.I("v_lshl_add_u32 v5, v4, 4, v5")
    a.I("v_lshlrev_b32 v6, 4, v1")
    a.I("s_lshl_b32 s22, s%d, 11" % s_rb)
    a.I("s_add_u32 s22, s22, %d" % XR_OFF)
    a.I("s_lshl_b32 s23, s%d, 2" % s_fb)
    a.I("s_add_u32 s23, s23, s%d" % S_W)
    a.I("s_mul_i32 s23, s23, %d" % (28 * 1024))
    a.I("s_add_u32 s23, s23, %d" % W1P_OFF)
    a.I("s_mul_i32 s24, s%d, %d" % (S_W, 28 * 1024))
    ids = {}
    for ks in range(28):
        if ks % 4 == 0:
            a.I("s_add_u32 m0, s24, %d" % (ks * 1024))
            a.I("s_add_u32 s25, s23, %d" % (ks * 1024))
        a.I("buffer_load_dwordx4 v6, %s, s25 offen offset:%d lds" % (WS, (ks % 4) * 1024))
        a.I("s_add_u32 s26, s22, %d" % (ks * 65536))
        ids[ks] = a.I("buffer_load_dwordx4 %s, v5, %s, s26 offen" % (vr(XF + 4 * ks, 4), WS))
    a.I("v_mov_b32 v7, 0")
    a.I("v_lshlrev_b32 v8, 2, v4")
    a.I("s_lshl_b32 s26, s%d, 9" % s_rb)
    a.I("s_add_u32 s26, s26, %d" % SSQ_OFF)
    a.I("s_cmp_eq_u32 s%d, 0" % s_fb)
    a.I("s_cselect_b32 s26, s26, %d" % WS_SIZE)
    a.I("buffer_store_dword v7, v8, %s, s26 offen" % WS)
    a.I("v_cmp_eq_u32 vcc, 0, v3")
    a.I("v_mov_b32 v9, 0xffff")
    a.I("v_cndmask_b32 v9, -1, v9, vcc")
    a.I("v_mov_b32 v10, 0")
    a.I("v_lshlrev_b32 v11, 6, v3")
    a.I("s_lshl_b32 s27, s%d, 9" % s_fb)
    a.I("s_add_u32 s27, s27, %d" % B1F_OFF)
    CH = 2
    for k0 in range(0, 28, CH):
        a.wait_vm_id(ids[k0 + CH - 1])
        a.barrier()
        for ks in range(k0, k0 + CH):
            for ft in range(4):
                off = (ft * 28 + ks) * 1024
                if off < 65536:
                    a.I("ds_read_b128 %s, v6 offset:%d" % (ar(16 * (ks % 4) + 4 * ft, 4), off))
                else:
                    if ks == 0 and ft == 3:
                        a.I("v_add_u32 v12, 0x10000, v6")
                    a.I("ds_read_b128 %s, v12 offset:%d" % (ar(16 * (ks % 4) + 4 * ft, 4), off - 65536))
        if k0 == 8:
            for j in range(16):
                a.I("buffer_load_dwordx4 %s, v11, %s, s27 offen offset:%d" % (vr(B1 + 4 * j, 4), WS, (j // 4) * 128 + (j % 4) * 16))
        for ks in range(k0, k0 + CH):
            for ft in range(4):
                c = vr(ACC + 16 * ft, 16)
                a.I("%s %s, %s, %s, %s" % (MF32, c, ar(16 * (ks % 4) + 4 * ft, 4), vr(XF + 4 * ks, 4), c if ks else "0"))
                x = XF + 4 * ks + ft
                if ks == 0 and ft == 0:
                    a.I("v_and_b32 v9, v9, v%d" % x)
                    x = 9
                a.I("v_dot2c_f32_bf16 v10, v%d, v%d" % (x, x))
    a.I("v_mov_b32 v13, v10")
    a.I("v_permlane32_swap_b32 v10, v13")
    a.I("v_add_f32 v10, v10, v13")
    a.I("v_mov_b32 v13, %s" % f32hex(EPS))
    a.I("v_fmamk_f32 v14, v10, %s, v13" % f32hex(1.0 / N))
    a.I("v_mul_f32 v14, v14, v13")
    a.I("v_fmamk_f32 v14, v10, %s, v14" % f32hex(1.0 / N))
    a.I("v_rsq_f32 v14, v14")
    a.I("v_mov_b32 v15, v14")
    c0 = -2.0 * math.sqrt(2.0 / math.pi) * math.log2(math.e)
    c1 = c0 * 0.044715
    a.I("s_mov_b32 s30, %s" % f32hex(c0))
    a.I("s_mov_b32 s31, %s" % f32hex(c0))
    a.I("s_mov_b32 s32, %s" % f32hex(c1))
    a.I("s_mov_b32 s33, %s" % f32hex(c1))
    a.I("v_mov_b32 v12, s30")
    a.I("v_mov_b32 v13, s30")
    T = XF
    a.I("s_lshl_b32 s22, s%d, 11" % s_rb)
    a.I("s_lshl_b32 s23, s%d, 19" % s_fb)
    a.I("s_add_u32 s22, s22, s23")
    a.I("s_add_u32 s22, s22, %d" % HX_OFF)
    for ft in range(4):
        A = ACC + 16 * ft
        Bv = B1 + 16 * ft
        Tt = T + 16 * (ft % 2)
        PK = T + 32 + 8 * (ft % 2)
        for j in range(0, 16, 2):
            a.I("v_pk_fma_f32 %s, %s, v[14:15], %s" % (vr(A + j, 2), vr(A + j, 2), vr(Bv + j, 2)))
        for j in range(0, 16, 2):
            a.I("v_pk_mul_f32 %s, %s, %s" % (vr(Tt + j, 2), vr(A + j, 2), vr(A + j, 2)))
        for j in range(0, 16, 2):
            a.I("v_pk_fma_f32 %s, %s, s[32:33], v[12:13]" % (vr(Tt + j, 2), vr(Tt + j, 2)))
        for j in range(0, 16, 2):
            a.I("v_pk_mul_f32 %s, %s, %s" % (vr(Tt + j, 2), vr(Tt + j, 2), vr(A + j, 2)))
        for j in range(16):
            a.I("v_exp_f32 v%d, v%d" % (Tt + j, Tt + j))
        for j in range(0, 16, 2):
            a.I("v_pk_add_f32 %s, %s, 1.0 op_sel_hi:[1,0]" % (vr(Tt + j, 2), vr(Tt + j, 2)))
        for j in range(16):
            a.I("v_rcp_f32 v%d, v%d" % (Tt + j, Tt + j))
        for j in range(0, 16, 2):
            a.I("v_pk_mul_f32 %s, %s, %s" % (vr(Tt + j, 2), vr(Tt + j, 2), vr(A + j, 2)))
        for j in range(8):
            a.I("v_cvt_pk_bf16_f32 v%d, v%d, v%d" % (PK + j, Tt + 2 * j, Tt + 2 * j + 1))
        for hh in range(2):
            a.I("s_add_u32 s23, s22, %d" % ((4 * ft + 2 * hh) * 32768))
            a.I("buffer_store_dwordx4 %s, v5, %s, s23 offen" % (vr(PK + 4 * hh, 4), WS))
    a.I("s_endpgm")


def job_gemm2(a, final):
    s_rb, s_cb = 20, 21
    ACC, TMP, RES, BI = 16, 80, 128, 144
    KS = 35 if final else 28
    KT = 4 * KS
    WOFF = W2R_OFF if final else W2P_OFF
    DEPTH = 14
    decode_4x7(a, s_rb, s_cb, 22)
    load_srd(a, 4, "ws")
    if final:
        load_srd(a, 8, "out")
        load_srd(a, 12, "b2")
    lane_wave(a)
    a.I("v_lshlrev_b32 v6, 4, v1")
    a.I("v_lshrrev_b32 v3, 5, v1")
    a.I("v_and_b32 v4, 31, v1")
    a.I("v_lshlrev_b32 v5, 15, v3")
    a.I("v_lshl_add_u32 v5, v4, 4, v5")
    for i2 in range(2):
        a.I("s_lshr_b32 s30, s%d, 1" % S_W)
        a.I("s_xor_b32 s30, s30, %d" % i2)
        a.I("s_lshl_b32 s31, s%d, 1" % s_cb)
        a.I("s_add_u32 s30, s30, s31")
        a.I("s_mul_i32 s30, s30, %d" % KT)
        a.I("s_mul_i32 s31, s%d, %d" % (S_W, KS))
        a.I("s_add_u32 s30, s30, s31")
        a.I("s_lshl_b32 s30, s30, 10")
        a.I("s_add_u32 s%d, s30, %d" % (22 + i2, WOFF))
    for j2 in range(2):
        a.I("s_and_b32 s30, s%d, 1" % S_W)
        a.I("s_xor_b32 s30, s30, %d" % j2)
        a.I("s_lshl_b32 s30, s30, 9")
        a.I("s_lshl_b32 s31, s%d, 10" % s_rb)
        a.I("s_add_u32 s30, s30, s31")
        a.I("s_mul_i32 s31, s%d, %d" % (S_W, KS * 65536))
        a.I("s_add_u32 s30, s30, s31")
        a.I("s_add_u32 s%d, s30, %d" % (24 + j2, HX_OFF))

    def issue(j):
        slot = 16 * (j % DEPTH)
        for i2 in range(2):
            if j % 4 == 0:
                a.I("s_add_u32 s%d, s%d, %d" % (26 + i2, 22 + i2, j * 1024))
            a.I("buffer_load_dwordx4 %s, v6, %s, s%d offen offset:%d" % (ar(slot + 4 * i2, 4), WS, 26 + i2, (j % 4) * 1024))
            a.I("s_add_u32 s28, s%d, %d" % (24 + i2, j * 65536))
            a.I("buffer_load_dwordx4 %s, v5, %s, s28 offen" % (ar(slot + 8 + 4 * i2, 4), WS))

    def epi_loads():
        if not final:
            a.I("v_lshlrev_b32 v7, 3, v3")
            a.I("v_lshl_add_u32 v7, v4, 4, v7")
            a.I("s_lshl_b32 s30, s%d, 1" % s_cb)
            a.I("s_lshr_b32 s31, s%d, 1" % S_W)
            a.I("s_add_u32 s30, s30, s31")
            a.I("s_lshl_b32 s32, s30, 7")
            a.I("s_add_u32 s32, s32, %d" % B2P_OFF)
            a.I("s_lshl_b32 s30, s30, 17")
            a.I("s_lshl_b32 s31, s%d, 10" % s_rb)
            a.I("s_add_u32 s30, s30, s31")
            a.I("s_and_b32 s31, s%d, 1" % S_W)
            a.I("s_lshl_b32 s31, s31, 9")
            a.I("s_add_u32 s30, s30, s31")
            for j in range(4):
                a.I("s_add_u32 s31, s30, %d" % (XR_OFF + j * 32768))
                a.I("buffer_load_dwordx2 %s, v7, %s, s31 offen" % (vr(RES + 2 * j, 2), WS))
            a.I("v_lshlrev_b32 v8, 4, v3")
            for j in range(4):
                a.I("buffer_load_dwordx4 %s, v8, %s, s32 offen offset:%d" % (vr(BI + 4 * j, 4), WS, 32 * j))
        else:
            a.I("s_lshl_b32 s30, s%d, 1" % s_cb)
            a.I("s_lshr_b32 s31, s%d, 1" % S_W)
            a.I("s_add_u32 s30, s30, s31")
            a.I("s_lshl_b32 s32, s30, 6")
            a.I("v_lshlrev_b32 v8, 3, v3")
            for j in range(4):
                a.I("buffer_load_dwordx2 %s, v8, %s, s32 offen offset:%d" % (vr(RES + 2 * j, 2), SB, 16 * j))

    for j in range(DEPTH):
        issue(j)
    for j in range(KS):
        slot = 16 * (j % DEPTH)
        for i in range(4):
            i2, j2 = i // 2, i % 2
            c = vr(ACC + 16 * i, 16)
            a.I("%s %s, %s, %s, %s" % (MF32, c, ar(slot + 4 * i2, 4), ar(slot + 8 + 4 * j2, 4), c if j else "0"))
        if j + DEPTH < KS:
            issue(j + DEPTH)
        if j + DEPTH == KS + 1:
            epi_loads()
    sk4_reduce(a, ACC, TMP, 10, pre_barrier=False)
    U = TMP
    for j in range(8):
        a.I("v_lshlrev_b32 v%d, 16, v%d" % (U + 2 * j, RES + j))
        a.I("v_and_b32 v%d, 0xffff0000, v%d" % (U + 2 * j + 1, RES + j))
    for j in range(8):
        a.I("v_pk_add_f32 %s, %s, %s" % (vr(ACC + 2 * j, 2), vr(ACC + 2 * j, 2), vr(U + 2 * j, 2)))
    PK = TMP + 16
    if not final:
        for j in range(8):
            a.I("v_pk_add_f32 %s, %s, %s" % (vr(ACC + 2 * j, 2), vr(ACC + 2 * j, 2), vr(BI + 2 * j, 2)))
        for j in range(8):
            a.I("v_cvt_pk_bf16_f32 v%d, v%d, v%d" % (PK + j, ACC + 2 * j, ACC + 2 * j + 1))
        store_xc(a, PK, s_rb, s_cb, 10)
        a.I("s_lshr_b32 s30, s%d, 1" % S_W)
        a.I("s_or_b32 s30, s30, s%d" % s_cb)
        a.I("v_or_b32 v10, s30, v3")
        a.I("v_cmp_eq_u32 vcc, 0, v10")
        a.I("v_cndmask_b32 v%d, v%d, 0, vcc" % (ACC + 1, ACC + 1))
        a.I("v_pk_mul_f32 v[10:11], %s, %s" % (vr(ACC, 2), vr(ACC, 2)))
        for j in range(1, 8):
            a.I("v_pk_fma_f32 v[10:11], %s, %s, v[10:11]" % (vr(ACC + 2 * j, 2), vr(ACC + 2 * j, 2)))
        a.I("v_add_f32 v10, v10, v11")
        a.I("v_mov_b32 v11, v10")
        a.I("v_permlane32_swap_b32 v10, v11")
        a.I("v_add_f32 v10, v10, v11")
        a.I("v_lshlrev_b32 v11, 2, v4")
        a.I("s_lshl_b32 s30, s%d, 8" % s_rb)
        a.I("s_and_b32 s31, s%d, 1" % S_W)
        a.I("s_lshl_b32 s31, s31, 7")
        a.I("s_add_u32 s30, s30, s31")
        a.I("s_add_u32 s30, s30, %d" % SSQ_OFF)
        a.I("s_mov_b64 exec, 0xffffffff")
        a.I("buffer_atomic_add_f32 v10, v11, %s, s30 offen" % WS)
    else:
        for j in range(8):
            a.I("v_cvt_pk_bf16_f32 v%d, v%d, v%d" % (PK + j, ACC + 2 * j, ACC + 2 * j + 1))
        for jj in range(2):
            a.I("v_permlane32_swap_b32 v%d, v%d" % (PK + 4 * jj, PK + 4 * jj + 2))
            a.I("v_permlane32_swap_b32 v%d, v%d" % (PK + 4 * jj + 1, PK + 4 * jj + 3))
        a.I("v_mul_u32_u24 v10, 896, v4")
        a.I("v_lshl_add_u32 v10, v3, 4, v10")
        a.I("s_lshl_b32 s30, s%d, 1" % s_rb)
        a.I("s_and_b32 s31, s%d, 1" % S_W)
        a.I("s_add_u32 s30, s30, s31")
        a.I("s_mul_i32 s30, s30, %d" % (32 * 896))
        a.I("s_add_u32 s30, s30, s32")
        for jj in range(2):
            a.I("buffer_store_dwordx4 %s, v10, %s, s30 offen offset:%d" % (vr(PK + 4 * jj, 4), SA, 32 * jj))
    a.I("s_endpgm")


JOBS = {
    "a": (lambda a: job_rowgemm(a, "a"), 224, 58368),
    "c": (lambda a: job_rowgemm(a, "c"), 224, 58368),
    "w1p": (job_w1p, 224, 57344),
    "w2r": (job_w2r, 28, 57344),
    "ft": (job_ft, 14, 0),
    "stats": (job_stats, 64, 0),
    "wt": (job_wt, 128, 16384),
    "b1f": (job_b1f, 7, 0),
    "col": (job_col, 224, 16384),
    "g1": (job_gemm1, 224, 114688),
    "g2": (lambda a: job_gemm2(a, False), 224, 49152),
    "g2f": (lambda a: job_gemm2(a, True), 224, 49152),
}

KERNELS = [
    ("k1_kernel", ["a", "wt", "stats", "ft", "b1f"]),
    ("k2_kernel", ["col", "w1p", "c"]),
    ("k3_kernel", ["g1"]),
    ("k4_kernel", ["g2"]),
    ("k5_kernel", ["col", "w2r"]),
    ("k3_kernel", ["g1"]),
    ("k7_kernel", ["g2f"]),
]


def build(kernels=KERNELS):
    ref = open(os.path.join(os.path.dirname(os.path.abspath(__file__)), "..", "cdna_kernels", NAME + ".s.ref")).read()
    head = [l for l in ref.splitlines() if l.startswith(";") and "@launch" not in l and "Override launch" not in l and "grid=ceil" not in l]
    out = list(head)
    body = []
    job_regs = {}
    emitted = set()
    desc = []
    seen = set()
    jobtext = {}
    for kname, jobs in kernels:
        for j in jobs:
            if j not in jobtext:
                a = Asm()
                a.label("J_" + j)
                JOBS[j][0](a)
                jobtext[j] = a.text()
                job_regs[j] = (a.maxv + 1, a.maxa + 1, a.maxs + 1, a.nins)
    for kname, jobs in kernels:
        total = 0
        starts = []
        for j in jobs:
            starts.append(total)
            total += (JOBS[j][1] + 7) // 8 * 8 if j != jobs[-1] else JOBS[j][1]
        lds = max(JOBS[j][2] for j in jobs)
        out.append("; @launch kernel=%s grid=(%d,1,1) block=(256,1,1) lds=%d" % (kname, total, lds))
        if kname in seen:
            continue
        seen.add(kname)
        body.append(".globl %s\n.p2align 8\n.type %s,@function\n%s:" % (kname, kname, kname))
        for j, st in zip(jobs, starts):
            body.append("    s_sub_u32 s%d, s2, %d" % (S_IDX, st))
            body.append("    s_cmp_lt_u32 s%d, %d" % (S_IDX, JOBS[j][1]))
            body.append("    s_cbranch_scc1 J_%s" % j)
        body.append("    s_endpgm")
        for j in jobs:
            if j not in emitted:
                emitted.add(j)
                body.append(".p2align 6")
                body.append(jobtext[j])
        nv = max(job_regs[j][0] for j in jobs)
        na = max(job_regs[j][1] for j in jobs)
        ns = max(job_regs[j][2] for j in jobs)
        acc = (nv + 3) // 4 * 4
        desc.append(""".p2align 6
.amdhsa_kernel %s
  .amdhsa_next_free_vgpr %d
  .amdhsa_next_free_sgpr %d
  .amdhsa_accum_offset %d
  .amdhsa_group_segment_fixed_size 0
  .amdhsa_kernarg_size 88
  .amdhsa_user_sgpr_count 2
  .amdhsa_user_sgpr_kernarg_segment_ptr 1
  .amdhsa_system_sgpr_workgroup_id_x 1
.end_amdhsa_kernel""" % (kname, acc + na if na else nv, max(ns, 36), acc))
    out.append('.amdgcn_target "amdgcn-amd-amdhsa--gfx950"')
    out.append(".text")
    out += body
    out.append("L_exit:\n    s_endpgm")
    out.append('.section .rodata,"a"')
    out += desc
    for j, r in job_regs.items():
        sys.stderr.write("job %-6s vgpr %3d agpr %3d sgpr %3d instrs %d\n" % (j, *r))
    return "\n".join(out) + "\n"


if __name__ == "__main__":
    dst = sys.argv[1] if len(sys.argv) > 1 else os.path.join(os.path.dirname(os.path.abspath(__file__)), "..", "cdna_kernels", NAME + ".s")
    open(dst, "w").write(build())
```
